```python
import torch

def _softmax(x, axis=-1):
    return torch.softmax(x, dim=axis)
def _gelu(x):
    return torch.nn.functional.gelu(x, approximate="tanh")
def _silu(x):
    return torch.nn.functional.silu(x)
def _sigmoid(x):
    return torch.sigmoid(x)
def _layernorm(x, axis=-1, eps=1e-5):
    m = x.mean(dim=axis, keepdim=True)
    v = x.var(dim=axis, keepdim=True, unbiased=False)
    return (x - m) / torch.sqrt(v + eps)
def _scatter_add(tgt, idx, src, axis=0):
    return tgt.clone().index_add_(axis, idx, src)
def _segment_sum(src, seg, n):
    out = torch.zeros((n,) + src.shape[1:], dtype=src.dtype)
    return out.index_add_(0, seg, src)
def _pad(x, pw):
    flat = tuple(v for pair in reversed(pw) for v in pair)
    return torch.nn.functional.pad(x, flat)

kernel_name = 'standalone__adm_resblock__diffusion'

def setup_inputs():

    _w = (lambda a: (lambda t: t.to(torch.bfloat16) if t.is_floating_point() else t)(torch.as_tensor(a)))
    B, C, HW, E = 2, 320, 64, 384
    sc = (9.0 * C) ** -0.5
    return {
        "x": _w((lambda *s: torch.randn(*s, dtype=torch.bfloat16) * 0.05)(B, C, HW, HW)),
        "t_emb": _w((lambda *s: torch.randn(*s, dtype=torch.bfloat16) * 0.4)(B, E)),
        "g1": _w(1.0 + 0.1 * (lambda *s: torch.randn(*s, dtype=torch.bfloat16) * 0.4)(C)),
        "be1": _w(0.1 * (lambda *s: torch.randn(*s, dtype=torch.bfloat16) * 0.4)(C)),
        "w1": _w((lambda *s: torch.randn(*s, dtype=torch.bfloat16) * 0.4)(C, C, 3, 3) * sc),
        "w_emb": _w((lambda *s: torch.randn(*s, dtype=torch.bfloat16) * 0.4)(E, C) * (E ** -0.5)),
        "g2": _w(1.0 + 0.1 * (lambda *s: torch.randn(*s, dtype=torch.bfloat16) * 0.4)(C)),
        "be2": _w(0.1 * (lambda *s: torch.randn(*s, dtype=torch.bfloat16) * 0.4)(C)),
        "w2": _w((lambda *s: torch.randn(*s, dtype=torch.bfloat16) * 0.4)(C, C, 3, 3) * sc),
    }

def reference(x, t_emb, g1, be1, w1, w_emb, g2, be2, w2):
    B, C, H, W = x.shape
    G, eps = 4, 1e-5
    def gn(z, gamma, beta):
        zr = z.reshape(B, G, (C // G) * H * W)
        mu = zr.mean(-1).reshape(B, G, 1)
        var = ((zr - mu) ** 2).mean(-1).reshape(B, G, 1)
        zn = ((zr - mu) / torch.sqrt(var + eps)).reshape(B, C, H, W)
        return zn * gamma.reshape(1, C, 1, 1) + beta.reshape(1, C, 1, 1)
    def conv3(z, w):
        zp = _pad(z, ((0, 0), (0, 0), (1, 1), (1, 1)))
        taps = [torch.einsum("bchw,oc->bohw", zp[:, :, i:i+H, j:j+W], w[:, :, i, j]) for i in range(3) for j in range(3)]
        out = taps[0]
        for t in taps[1:]:
            out = out + t
        return out
    h = conv3(_silu(gn(x, g1, be1)), w1)
    emb = _silu(t_emb) @ w_emb
    h = h + emb.reshape(B, C, 1, 1)
    h = conv3(_silu(gn(h, g2, be2)), w2)
    return x + h
```

```python
import re


class Builder:
    def __init__(self):
        self.lines = []
        self.vm = []
        self.lg = []

    def e(self, text):
        for ln in text.split("\n"):
            ln = ln.strip()
            if ln:
                self.lines.append(ln)

    def c(self, text):
        self.lines.append("; " + text)

    def vmem(self, text, label=None):
        self.e(text)
        self.vm.append(label)

    def ds(self, text, label=None):
        self.e(text)
        self.lg.append(label)

    @staticmethod
    def _count(q, labels, cap):
        idx = -1
        for lb in labels:
            for i in range(len(q) - 1, -1, -1):
                if q[i] == lb:
                    idx = max(idx, i)
                    break
        if idx < 0:
            return None
        return min(len(q) - 1 - idx, cap)

    def wait(self, v=(), l=()):
        nv = self._count(self.vm, v, 63)
        nl = self._count(self.lg, l, 15)
        parts = []
        if nv is not None:
            parts.append(f"vmcnt({nv})")
            self.vm = self.vm[len(self.vm) - nv:] if nv else []
        if nl is not None:
            parts.append(f"lgkmcnt({nl})")
            self.lg = self.lg[len(self.lg) - nl:] if nl else []
        if parts:
            self.e("s_waitcnt " + " ".join(parts))
        return bool(parts)

    def wait_all(self, v=False, l=False):
        parts = []
        if v:
            parts.append("vmcnt(0)")
            self.vm = []
        if l:
            parts.append("lgkmcnt(0)")
            self.lg = []
        self.e("s_waitcnt " + " ".join(parts))

    def text(self):
        out = []
        for ln in self.lines:
            if ln.endswith(":") or ln.startswith(".") or ln.startswith(";"):
                out.append(ln)
            else:
                out.append("    " + ln)
        return "\n".join(out) + "\n"


_REG = re.compile(r"\b([vas])(\d+)\b|\b([vas])\[(\d+):(\d+)\]|\b(vcc|exec|m0)\b")
TRANS = ("v_exp_f32", "v_log_f32", "v_rcp_f32", "v_rsq_f32", "v_sqrt_f32")


def regs_of(op):
    out = set()
    for m in _REG.finditer(op):
        if m.group(1):
            out.add(m.group(1) + m.group(2))
        elif m.group(3):
            for i in range(int(m.group(4)), int(m.group(5)) + 1):
                out.add(m.group(3) + str(i))
        else:
            out.add(m.group(6))
    return out


def split_ops(rest):
    return [x.strip() for x in rest.split(",")]


class Ins:
    pass


def parse(line):
    ln = line.split(";")[0].strip()
    if not ln or ln.endswith(":") or ln.startswith("."):
        return None
    parts = ln.split(None, 1)
    i = Ins()
    i.text = ln
    i.op = parts[0]
    ops = split_ops(parts[1]) if len(parts) > 1 else []
    i.w, i.r = set(), set()
    i.states = 1
    i.kind = "salu"
    i.srcc = set()
    i.ab = set()
    i.data = set()
    op = i.op
    if op == "s_nop":
        i.states = int(ops[0], 0) + 1
        i.kind = "nop"
    elif op.startswith("v_mfma"):
        i.kind = "mfma"
        i.w = regs_of(ops[0])
        i.ab = regs_of(ops[1]) | regs_of(ops[2])
        i.srcc = regs_of(ops[3])
        i.r = i.ab | i.srcc
    elif op.startswith("v_"):
        i.kind = "valu"
        i.w = regs_of(ops[0])
        for o in ops[1:]:
            i.r |= regs_of(o)
        if op.startswith(("v_fmac", "v_dot2c", "v_writelane", "v_pk_fmac")) or "dpp" in op:
            i.r |= i.w
        if op.startswith("v_permlane"):
            i.w |= regs_of(ops[1])
            i.r |= i.w
        if op.startswith(("v_add_co", "v_addc_co", "v_sub_co")):
            i.w |= regs_of(ops[1])
    elif op.startswith("ds_"):
        i.kind = "ds"
        if op.startswith("ds_read"):
            i.w = regs_of(ops[0])
            for o in ops[1:]:
                i.r |= regs_of(o)
        else:
            for o in ops:
                i.r |= regs_of(o)
    elif op.startswith(("buffer_", "global_")):
        i.kind = "vmem"
        lds = ln.endswith(" lds") or " lds " in ln
        i.lds = lds
        if "load" in op and not lds:
            i.w = regs_of(ops[0])
            for o in ops[1:]:
                i.r |= regs_of(o)
        else:
            for o in ops:
                i.r |= regs_of(o)
            if lds:
                i.r.add("m0")
            if "store" in op and ("x4" in op or "x3" in op):
                i.data = regs_of(ops[0] if op.startswith("buffer_") else ops[1])
    elif op.startswith("s_"):
        if op.startswith(("s_cmp", "s_waitcnt", "s_branch", "s_cbranch", "s_barrier", "s_endpgm", "s_sleep", "s_setprio")):
            for o in ops:
                i.r |= regs_of(o)
        else:
            i.w = regs_of(ops[0])
            for o in ops[1:]:
                i.r |= regs_of(o)
    return i


def need(p, c):
    n = 0
    vw = {x for x in p.w if x[0] in "va" and x != "vcc"}
    sw = {x for x in p.w if x[0] == "s" or x == "vcc"}
    if p.kind == "valu":
        dot = p.op.startswith("v_dot2")
        if c.kind == "mfma" and vw & c.r:
            n = max(n, 3 if dot else 2)
        if c.kind == "valu":
            if ("dpp" in c.op or c.op.startswith("v_permlane")) and vw & c.r:
                n = max(n, 2)
            if c.op.startswith(("v_readlane", "v_readfirstlane")) and vw & c.r:
                n = max(n, 1)
            if p.op.startswith(TRANS) and not c.op.startswith(TRANS) and vw & c.r:
                n = max(n, 1)
            if sw & c.r:
                n = max(n, 4 if c.op.startswith(("v_readlane", "v_writelane")) else 2)
            if dot and c.op != p.op and vw & (c.r | c.w):
                n = max(n, 3)
        if dot and c.kind in ("ds", "vmem") and vw & c.r:
            n = max(n, 3)
        if c.kind == "vmem" and sw & c.r:
            n = max(n, 5)
    if p.kind == "mfma":
        if c.kind == "mfma":
            if p.w & c.ab:
                n = max(n, 8)
            if p.w & c.srcc and p.w != c.srcc:
                n = max(n, 6)
        elif c.kind in ("valu", "ds", "vmem") and p.w & (c.r | c.w):
            n = max(n, 8)
        if c.kind == "valu" and p.srcc & c.w:
            n = max(n, 3)
    if p.kind == "salu" and "m0" in p.w and c.kind == "vmem" and getattr(c, "lds", False):
        n = max(n, 1)
    if p.kind == "vmem" and p.data and p.data & c.w:
        n = max(n, 2 if c.kind == "valu" else 1)
    return n


def check_hazards(lines):
    ins = []
    labels = {}
    for ln in lines:
        s = ln.strip()
        if s.endswith(":") and not s.startswith(";"):
            labels[s[:-1]] = len(ins)
            continue
        i = parse(s) if not s.startswith(";") else None
        if i:
            ins.append(i)
    errs = []

    def scan(seq):
        for a, p in enumerate(seq):
            dist = 0
            for c in seq[a + 1:a + 12]:
                n = need(p, c)
                if n > dist:
                    errs.append(f"hazard need {n} have {dist}: [{p.text}] -> [{c.text}]")
                dist += c.states
                if dist >= 9 or c.op in ("s_branch", "s_endpgm"):
                    break

    scan(ins)
    for k, i in enumerate(ins):
        if i.op.startswith(("s_branch", "s_cbranch")):
            tgt = i.text.split()[-1]
            if tgt in labels:
                br = parse("s_nop 0")
                scan(ins[max(0, k - 10):k] + [br] + ins[labels[tgt]:labels[tgt] + 10])
    return sorted(set(errs))
```

```python
import struct
import sys
from asmlib import Builder, check_hazards

NAME = "standalone__adm_resblock__diffusion_kernel"


def f32(x):
    return "0x%08x" % struct.unpack("<I", struct.pack("<f", x))[0]


LOG2E = 1.4426950408889634

WS_STATS = 0x1000
WS_WFLAG = 0x30000
WS_AFLAG = 0x40000
WS_WT = 0x100000
WS_ACT = 0x600000
WS_DBG = 0x1000000
WS_SIZE = 0x1100000
STREAM = 270 * 1024
CONVS = 135 * 1024

ROW = 2080
WSZ = 18 * ROW
L_SCR = 4 * WSZ + 32
L_PAR = L_SCR + 64
L_EMB = L_PAR + 640
LDS_BYTES = L_EMB + 320

sW = 3
sPX, sPT, sPG1, sPB1, sPW1, sPWE, sPG2, sPB2, sPW2, sPO, sPD, sPWS = 4, 6, 8, 10, 12, 14, 16, 18, 20, 22, 24, 26
rX, rO, rWS, rA0, rA3 = 28, 32, 36, 40, 44
sB, sRP, sG, sU = 48, 49, 50, 51
sTAG = 52
sXO, sA, sLB = 54, 55, 56
sPL = 57
sPH = 61
sRS = 62
sAS = 63
sC = 64
sFP, sFM = 65, 66
sMASK = 67
sROLE = 68
sSB = 69
sT = 70
sSTAMP = 78

vL, vL16, vXo, vAo = 1, 2, 3, 4
vBS, vBL = 5, 7
vOB, vIB = 9, 10
vLW = 13
vPR, vFP, vL8 = 15, 16, 17
vRS, vKK = 18, 19
vGR = 20
vT = 24
H, X, B, BL, XI = 32, 72, 92, 156, 204
G, BE = BL, BL + 20
RING = 120
NRING = 30


def vr(b, n=4):
    return f"v[{b}:{b+n-1}]" if n > 1 else f"v{b}"


def ar(b, n=4):
    return f"a[{b}:{b+n-1}]"


def sr(b, n=4):
    return f"s[{b}:{b+n-1}]"


class Gen:
    def __init__(self, stamps=False, opts=None):
        self.k = Builder()
        self.stamps = stamps
        self.nstamp = 0
        self.stamp_names = []
        self.next_frag = 0
        self.side = []
        self.o = opts or {}

    def stamp(self, name):
        if self.stamps and self.nstamp < 12:
            self.k.e(f"s_memrealtime {sr(sSTAMP + 2*self.nstamp, 2)}")
            self.nstamp += 1
            self.stamp_names.append(name)

    def plane_of(self, dst, n, t0, t1):
        k = self.k
        k.e(f"""s_mul_i32 s{t0}, s{n}, 11
        s_lshr_b32 s{t0}, s{t0}, 5
        s_min_u32 s{t0}, s{t0}, 4
        s_mul_i32 s{t1}, s{t0}, 3
        s_sub_u32 s{t1}, s{n}, s{t1}
        s_add_u32 s{t1}, s{t1}, s{sG}
        s_add_u32 s{t1}, s{t1}, 1
        s_and_b32 s{t1}, s{t1}, 3
        s_mul_i32 s{t1}, s{t1}, 5
        s_add_u32 s{dst}, s{t1}, s{t0}""")

    def dpp_reduce(self, regs, full):
        k = self.k
        steps = [f"row_shr:{s} row_mask:0xf bank_mask:0xf bound_ctrl:0" for s in (1, 2, 4, 8)]
        steps.append("row_bcast:15 row_mask:0xa bank_mask:0xf")
        if full:
            steps.append("row_bcast:31 row_mask:0xc bank_mask:0xf")
        pad = max(0, 3 - len(regs))
        for st in steps:
            if pad:
                k.e(f"s_nop {pad-1}")
            for r in regs:
                k.e(f"v_add_f32_dpp v{r}, v{r}, v{r} {st}")

    def poll(self, name, loads, cmps):
        k = self.k
        k.e(f"s_mov_b32 s{sT+6}, 0")
        k.e(f"{name}:")
        for ld in loads:
            k.e(ld)
        k.e(f"""s_add_u32 s{sT+6}, s{sT+6}, 1
        s_cmp_gt_u32 s{sT+6}, 0x20000
        s_cbranch_scc1 {name}_out""")
        k.wait_all(v=True)
        for i, (r, mask) in enumerate(cmps):
            dst = "vcc" if i == 0 else sr(sT + 4, 2)
            k.e(f"v_cmp_ne_u64 {dst}, {sr(sTAG,2)}, {vr(r,2)}")
            if mask is not None:
                k.e(f"s_and_b64 {dst}, {dst}, {mask}")
            if i:
                k.e(f"s_or_b64 vcc, vcc, {dst}")
        k.e(f"s_cbranch_vccnz {name}")
        k.e(f"{name}_out:")
        k.wait_all(v=True)

    def a_load_ops(self, n):
        ops = []
        for _ in range(n):
            f = self.next_frag
            if f >= 270:
                break
            self.next_frag += 1
            slot = RING + 4 * (f % NRING)
            ops.append(("v", f"buffer_load_dwordx4 {ar(slot)}, v{vL16}, {sr(rWS)}, s{sA} offen offset:{(f % 4) * 1024}", f"A{f}"))
            if f % 4 == 3:
                ops.append(("s", f"s_add_u32 s{sA}, s{sA}, 4096", None))
        return ops

    def dma_row_ops(self, soff_expr, slot, srd, label):
        t = sT + 7
        return [("s", soff_expr.format(t=t), None),
                ("s", f"s_add_u32 m0, s{sLB}, {slot * ROW + 32}", None),
                ("n", "s_nop 0", None),
                ("v", f"buffer_load_dwordx4 v{vL16}, {sr(srd)}, s{t} offen lds", label),
                ("v", f"buffer_load_dwordx4 v{vL16}, {sr(srd)}, s{t} offen offset:1024 lds", label)]

    def dma_pair_ops(self, pair, phase):
        ops = []
        for row in range(4):
            for hh in range(2):
                p = sPL + pair * 2 + hh
                srd = rA0 if row == 0 else (rA3 if row == 3 else rWS)
                ops += self.dma_row_ops(f"s_add_u32 s{{t}}, s{p}, {phase * 0x500000}", (pair * 2 + hh) * 4 + row, srd, f"D{phase}{pair}")
                ops.append(("s", f"s_add_u32 s{p}, s{p}, s{sRS}", None))
        for hh in range(2):
            p = sPL + pair * 2 + hh
            ops.append(("s", f"s_lshl_b32 s{sT+7}, s{sRS}, 2", None))
            ops.append(("s", f"s_sub_u32 s{p}, s{p}, s{sT+7}", None))
        return ops

    def dma_tail_ops(self, phase):
        ops = []
        for hh in range(2):
            ops += self.dma_row_ops(f"s_add_u32 s{{t}}, s{sPH}, {phase * 0x500000 + hh * 2 * 131072}", 16 + hh, rA0, f"DT{phase}")
        return ops

    def emit_op(self, op, in_gap=False):
        kind, text, label = op[:3]
        if kind == "v":
            self.k.vmem(text, label)
        elif kind == "l":
            self.k.ds(text, label)
        elif kind == "w":
            self.k.wait(v=[label])
        elif kind == "n":
            if not in_gap:
                self.k.e(text)
        else:
            self.k.e(text)

    def emit_ops(self, ops):
        for op in ops:
            self.emit_op(op)

    def flush_side(self):
        while self.side:
            self.emit_op(self.side.pop(0)[1])

    def run(self, mf):
        k = self.k
        for i, m in enumerate(mf):
            pend = {op[2] for _, op in self.side if op[0] in "vl"}
            while pend & (set(m.get("v", ())) | set(m.get("l", ()))):
                self.emit_op(self.side.pop(0)[1])
                pend = {op[2] for _, op in self.side if op[0] in "vl"}
            k.wait(v=m.get("v", ()), l=m.get("l", ()))
            k.e(m["text"])
            self.tick += 1
            for delay, op in m.get("after", ()):
                self.side.append((self.tick + delay, op))
            nxt = mf[i + 1] if i + 1 < len(mf) else {}
            will_wait = any(x in k.vm for x in nxt.get("v", ())) or any(x in k.lg for x in nxt.get("l", ()))
            budget = 1 if will_wait else 2
            heavy = False
            while budget and self.side and self.side[0][0] <= self.tick:
                op = self.side[0][1]
                if op[0] == "n":
                    self.side.pop(0)
                    break
                if op[0] in "vl":
                    if heavy:
                        break
                    heavy = True
                self.side.pop(0)
                self.emit_op(op, True)
                budget -= 1

    def mfma(self, conv, rho, j, m, frag, breg, first):
        u, jj = rho * 2 + (j >> 1), j & 1
        if u == 0:
            d = vr(H + (jj * 5 + m) * 4)
            if first:
                c = vr(XI + m * 4) if conv == 0 else vr(XI + (jj * 5 + m) * 4)
            else:
                c = d
        else:
            d = ar(((u - 1) * 10 + jj * 5 + m) * 4)
            c = "0" if first else d
        a = ar(RING + 4 * (frag % NRING))
        b = vr(breg)
        x, y = (a, b) if conv == 0 else (b, a)
        return f"v_mfma_f32_16x16x32_bf16 {d}, {x}, {y}, {c}"

    def bl_read(self, dx, j, tagname):
        reg = BL + (dx * 4 + j) * 4
        return ("l", f"ds_read_b128 {vr(reg)}, v{vBL + (j >> 1)} offset:{dx * 32 + (j & 1) * 512}", f"{tagname}_{dx}{j}")

    def bs_read(self, conv, step, r, j):
        pair, dx = divmod(step, 3)
        reg = B + (r * 4 + j) * 4
        off = (pair * 8 + r) * ROW + dx * 32 + (j & 1) * 512
        return ("l", f"ds_read_b128 {vr(reg)}, v{vBS + (j >> 1)} offset:{off}", f"BS{conv}{step}_{r}{j}")

    def outbox_write(self, u, jj, m):
        s = (u - 1) * 10 + jj * 5 + m
        return ("l", f"ds_write_b128 v{vOB}, {ar(s * 4)} offset:{(s >> 1) * ROW + (s & 1) * 1024}", "OB")

    def phase_local(self, conv, rho):
        mf = []
        for m in range(5):
            f0 = conv * 135 + (rho * 5 + m) * 3
            for j in range(4):
                for dx in range(3):
                    e = {"text": self.mfma(conv, rho, j, m, f0 + dx, BL + (dx * 4 + j) * 4, dx == 0), "after": []}
                    if j == 0 and dx == 0:
                        e["v"] = [f"A{f0+2}"]
                    if m == 0 and dx == 0 and rho == 0:
                        e["l"] = [f"BL{conv}_{d}{j}" for d in range(3)] + [f"EM{conv}"]
                    mf.append(e)
            mf[-1]["after"] += [(0, op) for op in self.a_load_ops(3)]
        if rho == 1:
            pos = 60 - 20
            mf[pos]["after"].append((0, ("w", "", f"D{conv}0")))
            for j in range(4):
                for r in range(4):
                    mf[pos]["after"].append((0, self.bs_read(conv, 0, r, j)))
        return mf

    def phase_step(self, conv, step):
        mf = []
        for m in range(5):
            f0 = conv * 135 + 30 + (step * 5 + m) * 3
            for j in range(4):
                for rho in range(2):
                    for dy in range(3):
                        e = {"text": self.mfma(conv, rho, j, m, f0 + dy, B + ((rho + dy) * 4 + j) * 4, False), "after": []}
                        if j == 0 and rho == 0 and dy == 0:
                            e["v"] = [f"A{f0+2}"]
                        if m == 0 and rho == 0 and dy == 0:
                            e["l"] = [f"BS{conv}{step}_{r}{j}" for r in range(4)]
                        mf.append(e)
                if m == 4 and step < 5:
                    if step == 2 and j == 0:
                        mf[-1]["after"].append((0, ("w", "", f"D{conv}1")))
                    mf[-1]["after"] += [(0, self.bs_read(conv, step + 1, r, j)) for r in range(4)]
                if step == 5:
                    mf[-1]["after"].append((8, self.outbox_write(2 + (j >> 1), j & 1, m)))
            mf[-1]["after"] += [(0, op) for op in self.a_load_ops(3)]
        if step == 0:
            self.pair1 = self.dma_pair_ops(1, conv)
        if step in (0, 1):
            for m in range(4):
                n = 6
                ops, self.pair1 = self.pair1[:n], self.pair1[n:]
                if step == 1 and m == 3:
                    ops, self.pair1 = ops + self.pair1, []
                mf[m * 24 + 8]["after"] += [(0, op) for op in ops]
        if step == 3:
            mf[8]["after"] += [(0, op) for op in self.dma_tail_ops(conv)]
        if step == 5:
            mf[60]["after"].append((0, ("w", "", f"DT{conv}")))
            for j in (2, 3, 0, 1):
                mf[60]["after"] += [(0, self.bl_read(dx, j, f"BT{conv}")) for dx in range(3)]
        return mf

    def phase_tail(self, conv):
        mf = []
        for jp in (1, 0):
            for m in range(5):
                f0 = conv * 135 + 120 + m * 3
                for jj in range(2):
                    j = jp * 2 + jj
                    for dx in range(3):
                        e = {"text": self.mfma(conv, 0, j, m, f0 + dx, BL + (dx * 4 + j) * 4, False), "after": []}
                        if jp == 1 and jj == 0 and dx == 0:
                            e["v"] = [f"A{f0+2}"]
                        if m == 0 and dx == 0:
                            e["l"] = [f"BT{conv}_{d}{j}" for d in range(3)]
                        mf.append(e)
                    if jp == 1:
                        mf[-1]["after"].append((8, self.outbox_write(1, jj, m)))
                if jp == 0:
                    mf[-1]["after"] += [(0, op) for op in self.a_load_ops(3)]
        return mf

    def reduce(self):
        k = self.k
        self.flush_side()
        k.wait_all(l=True)
        k.e("s_barrier")
        for u in range(1, 4):
            for t in range(10):
                s = (u - 1) * 10 + t
                k.ds(f"ds_read_b128 {vr(B + s * 4)}, v{vIB + u - 1} offset:{(s >> 1) * ROW + (s & 1) * 1024}", f"R{s}")
                if s >= 10:
                    self.reduce_add(s - 10)
        for s in range(20, 30):
            self.reduce_add(s)

    def reduce_add(self, s):
        k = self.k
        k.wait(l=[f"R{s}"])
        t = s % 10
        for r in range(0, 4, 2):
            k.e(f"v_pk_add_f32 {vr(H + t*4 + r, 2)}, {vr(H + t*4 + r, 2)}, {vr(B + s*4 + r, 2)}")

    def wave_partial_to_lds(self):
        k = self.k
        self.dpp_reduce([vGR, vGR + 1], True)
        k.e(f"""s_lshl_b32 s{sT}, s{sW}, 3
        s_add_u32 s{sT}, s{sT}, {L_SCR}
        v_mov_b32 v{vT}, s{sT}
        s_mov_b32 exec_lo, 0
        s_mov_b32 exec_hi, 0x80000000""")
        k.ds(f"ds_write_b64 v{vT}, {vr(vGR,2)}")
        k.e("s_mov_b64 exec, -1")

    def publish_stats(self, phase):
        k = self.k
        k.e(f"v_mov_b32 v{vT}, {L_SCR}")
        k.ds(f"ds_read_b128 {vr(vT+4)}, v{vT}")
        k.ds(f"ds_read_b128 {vr(vT)}, v{vT} offset:16")
        k.e(f"""s_lshl_b32 s{sT}, s{sRP}, 4
        s_add_u32 s{sT}, s{sT}, s{sSB}
        s_add_u32 s{sT}, s{sT}, {phase * 0x10000}""")
        k.wait_all(l=True)
        k.e(f"""v_add_f32 v{vGR}, v{vT}, v{vT+2}
        v_add_f32 v{vGR+1}, v{vT+1}, v{vT+3}
        v_add_f32 v{vT+4}, v{vT+4}, v{vT+6}
        v_add_f32 v{vT+5}, v{vT+5}, v{vT+7}
        v_add_f32 v{vGR}, v{vGR}, v{vT+4}
        v_add_f32 v{vGR+1}, v{vGR+1}, v{vT+5}
        s_mov_b64 exec, 1
        buffer_store_dwordx4 {vr(vGR)}, v{vL16}, {sr(rWS)}, s{sT} offen sc1
        s_mov_b64 exec, -1""")

    def poll_stats(self, phase):
        k = self.k
        k.e(f"""s_add_u32 s{sT}, s{sSB}, {phase * 0x10000}
        s_mov_b32 exec_hi, 0""")
        self.poll(f"L_pstat{phase}", [f"buffer_load_dwordx4 {vr(vT)}, v{vL16}, {sr(rWS)}, s{sT} offen sc1"], [(vT + 2, None)])
        self.dpp_reduce([vT, vT + 1], False)
        inv_n = f32(1.0 / 327680.0)
        k.e(f"""v_mul_f32 v{vT}, {inv_n}, v{vT}
        v_mul_f32 v{vT+1}, {inv_n}, v{vT+1}
        v_fma_f32 v{vT+1}, -v{vT}, v{vT}, v{vT+1}
        v_max_f32 v{vT+1}, 0, v{vT+1}
        v_add_f32 v{vT+1}, {f32(1e-5)}, v{vT+1}
        v_rsq_f32 v{vT+1}, v{vT+1}
        v_mov_b32 v{vT+4}, {L_SCR + 32}
        v_mul_f32 v{vT+2}, s{sC}, v{vT+1}
        v_mul_f32 v{vT+3}, v{vT}, v{vT+2}
        v_sub_f32 v{vT+3}, 0, v{vT+3}
        s_mov_b32 exec_lo, 0x80000000""")
        k.ds(f"ds_write_b64 v{vT+4}, {vr(vT+2,2)}")
        k.e("s_mov_b64 exec, -1")

    def load_params(self, phase):
        k = self.k
        P = B + 20
        for a in range(2):
            for m in range(5):
                k.ds(f"ds_read_b64 {vr(P + a*10 + m*2, 2)}, v{vPR} offset:{(phase*2 + a) * 160 + m * 32}", f"P{a}")
        k.wait(l=["P0"])
        for m in range(5):
            for d in range(2):
                k.e(f"v_lshlrev_b32 v{G + m*4 + d*2}, 16, v{P + m*2 + d}")
                k.e(f"v_and_b32 v{G + m*4 + d*2 + 1}, 0xffff0000, v{P + m*2 + d}")
        k.wait(l=["P1"])
        for m in range(5):
            for d in range(2):
                k.e(f"v_lshlrev_b32 v{BE + m*4 + d*2}, 16, v{P + 10 + m*2 + d}")
                k.e(f"v_and_b32 v{BE + m*4 + d*2 + 1}, 0xffff0000, v{P + 10 + m*2 + d}")
        for i in range(20):
            k.e(f"v_mul_f32 v{BE + i}, s{sC}, v{BE + i}")
        for jj in range(2):
            for i in range(0, 20, 2):
                k.e(f"v_pk_mul_f32 {vr(H + jj*20 + i, 2)}, {vr(H + jj*20 + i, 2)}, {vr(G + i, 2)}")

    def activation(self, phase):
        k = self.k
        k.e(f"v_mov_b32 v{vT}, {L_SCR + 32}")
        k.ds(f"ds_read_b64 {vr(vRS,2)}, v{vT}")
        k.e(f"s_add_u32 s{sT}, s{sAS}, {phase * 0x500000}")
        k.wait_all(l=True)
        for m in range(5):
            E = B + (m & 1) * 8
            PK = B + 16 + m * 4
            z = [H + (jj * 5 + m) * 4 + r for jj in range(2) for r in range(4)]
            for r in range(4):
                k.e(f"v_fma_f32 v{BE + m*4 + r}, v{G + m*4 + r}, v{vKK}, v{BE + m*4 + r}")
            for i in range(8):
                k.e(f"v_fma_f32 v{z[i]}, v{z[i]}, v{vRS}, v{BE + m*4 + (i & 3)}")
            for i in range(8):
                k.e(f"v_exp_f32 v{E + i}, v{z[i]}")
            for i in range(8):
                k.e(f"v_fma_f32 v{E + i}, v{E + i}, s{sC}, s{sC}")
            for i in range(8):
                k.e(f"v_rcp_f32 v{E + i}, v{E + i}")
            for i in range(8):
                k.e(f"v_mul_f32 v{E + i}, v{z[i]}, v{E + i}")
            for i in range(4):
                k.e(f"v_cvt_pk_bf16_f32 v{PK + i}, v{E + 2*i}, v{E + 2*i + 1}")
            k.e("s_nop 0")
            k.e(f"v_permlane16_swap_b32 v{PK}, v{PK + 2}")
            k.e(f"v_permlane16_swap_b32 v{PK + 1}, v{PK + 3}")
            k.vmem(f"buffer_store_dwordx4 {vr(PK)}, v{vAo}, {sr(rWS)}, s{sT} offen sc1", f"AS{phase}")
            if m < 4:
                k.ds(f"ds_write_b128 v{vLW + (m >> 1)}, {vr(PK)} offset:{(m & 1) * WSZ}", "LW")
                k.e(f"s_add_u32 s{sT}, s{sT}, 131072")

    def push_flags(self, phase):
        k = self.k
        k.wait(v=[f"AS{phase}"])
        k.e(f"""s_add_u32 s{sT}, s{sFP}, {phase * 0x20000}
        s_mov_b64 exec, 0xff""")
        k.vmem(f"buffer_store_dwordx2 {vr(vGR+2,2)}, v{vFP}, {sr(rWS)}, s{sT} offen sc1")
        k.e("s_mov_b64 exec, -1")

    def poll_flags(self, phase):
        k = self.k
        k.e(f"""s_add_u32 s{sT}, s{sFM}, {phase * 0x20000}
        s_mov_b32 exec_lo, s{sMASK}
        s_mov_b32 exec_hi, 0""")
        self.poll(f"L_pact{phase}", [f"buffer_load_dwordx2 {vr(vT,2)}, v{vL8}, {sr(rWS)}, s{sT} offen sc1"], [(vT, None)])
        k.e("s_mov_b64 exec, -1")

    def role_loads(self):
        k = self.k
        t = sT
        k.c("role: 0 none, 1 weight re-layout unit, 2 time-embedding unit")
        k.e(f"""s_mov_b32 s{sROLE}, 0
        s_cmp_eq_u32 s{sW}, 0
        s_cbranch_scc1 L_role0_done
        s_cmp_eq_u32 s{sW}, 3
        s_cbranch_scc1 L_role0_emb
        s_cmp_ge_u32 s{sU}, 50
        s_cbranch_scc1 L_role0_done
        s_mov_b32 s{sROLE}, 1
        s_mul_i32 s{t}, s{sU}, 205
        s_lshr_b32 s{t}, s{t}, 11
        s_mul_i32 s{t+1}, s{t}, 10
        s_sub_u32 s{t+1}, s{sU}, s{t+1}
        s_and_b32 s{t+2}, s{t+1}, 1
        s_lshl_b32 s{t+2}, s{t+2}, 3
        s_and_b32 s{t+3}, s{t+1}, 6
        s_add_u32 s{t+2}, s{t+2}, s{t+3}""")
        self.plane_of(t + 3, t + 2, t + 5, t + 6)
        k.e(f"s_add_u32 s{t+2}, s{t+2}, 1")
        self.plane_of(t + 4, t + 2, t + 5, t + 6)
        k.e(f"""s_mul_i32 s{t+5}, s{sG}, 5
        s_add_u32 s{t+5}, s{t+5}, s{t+1}
        s_sub_u32 s{t+5}, s{t+5}, 8
        s_add_u32 s{t+6}, s{t+5}, 2
        s_cmp_ge_u32 s{t+1}, 8
        s_cselect_b32 s{t+3}, s{t+5}, s{t+3}
        s_cselect_b32 s{t+4}, s{t+6}, s{t+4}
        s_mul_i32 s{t+5}, s{sG}, 5
        s_add_u32 s{t+5}, s{t+5}, s{t}
        s_mul_i32 s{t+5}, s{t+5}, {16 * 5760}
        s_mul_i32 s{t+3}, s{t+3}, 288
        s_mul_i32 s{t+4}, s{t+4}, 288
        s_add_u32 s{t+3}, s{t+3}, s{t+5}
        s_add_u32 s{t+4}, s{t+4}, s{t+5}
        v_mov_b32 v{vT}, s{t+3}
        s_mov_b32 exec_lo, 0
        v_mov_b32 v{vT}, s{t+4}
        s_mov_b32 exec_lo, -1
        v_and_b32 v{vT+1}, 15, v{vL}
        v_mul_u32_u24 v{vT+1}, 5760, v{vT+1}
        v_bfe_u32 v{vT+2}, v{vL}, 4, 1
        v_mul_u32_u24 v{vT+2}, 144, v{vT+2}
        v_add3_u32 v{vT}, v{vT}, v{vT+1}, v{vT+2}
        s_cmp_eq_u32 s{sW}, 1
        s_cselect_b64 {sr(t+2,2)}, {sr(sPW1,2)}, {sr(sPW2,2)}""")
        for i in range(9):
            k.e(f"global_load_dwordx4 {vr(XI + 4*i)}, v{vT}, {sr(t+2,2)} offset:{16*i}")
        k.e(f"""s_branch L_role0_done
        L_role0_emb:
        s_cmp_ge_u32 s{sU}, 40
        s_cbranch_scc1 L_role0_done
        s_mov_b32 s{sROLE}, 2
        s_mul_i32 s{t}, s{sG}, 160
        s_lshl_b32 s{t+1}, s{sU}, 2
        s_add_u32 s{t}, s{t}, s{t+1}
        v_mul_u32_u24 v{vT}, 3840, v{vL}
        v_add_u32 v{vT}, s{t}, v{vT}
        v_mul_u32_u24 v{vT+1}, 12, v{vL}
        global_load_dwordx3 {vr(XI + 8, 3)}, v{vT+1}, {sr(sPT,2)}
        global_load_dwordx3 {vr(XI + 12, 3)}, v{vT+1}, {sr(sPT,2)} offset:768""")
        for i in range(6):
            k.e(f"global_load_dword v{XI + i}, v{vT}, {sr(sPWE,2)} offset:{640*i}")
        k.e("L_role0_done:")

    def role_weights(self):
        k = self.k
        t = sT
        k.e(f"""s_mov_b32 s{t+4}, 0x07060100
        s_mov_b32 s{t+5}, 0x05040302
        s_mul_i32 s{t}, s{sU}, 205
        s_lshr_b32 s{t}, s{t}, 11
        s_mul_i32 s{t+1}, s{t}, 10
        s_sub_u32 s{t+1}, s{sU}, s{t+1}
        s_waitcnt vmcnt(0)""")
        for tap in range(9):
            for d in range(4):
                e0, e1 = 18 * d + tap, 18 * d + 9 + tap
                k.e(f"v_perm_b32 v{B + tap*4 + d}, v{XI + (e1 >> 1)}, v{XI + (e0 >> 1)}, s{t + 4 + (tap & 1)}")
        k.c("s[t] = m, s[t+1] = k ; s[t+2] = stream base of (g, conv) + m*3 KiB")
        k.e(f"""s_mul_i32 s{t+2}, s{sG}, {4 * STREAM}
        s_sub_u32 s{t+3}, s{sW}, 1
        s_mul_i32 s{t+3}, s{t+3}, {CONVS}
        s_add_u32 s{t+2}, s{t+2}, s{t+3}
        s_mul_i32 s{t+3}, s{t}, 3072
        s_add_u32 s{t+2}, s{t+2}, s{t+3}
        s_add_u32 s{t+2}, s{t+2}, {WS_WT}
        s_cmp_ge_u32 s{t+1}, 8
        s_cbranch_scc1 L_wlocal
        s_lshr_b32 s{t+3}, s{t+1}, 1
        s_mul_i32 s{t+3}, s{t+3}, {STREAM}
        s_add_u32 s{t+2}, s{t+2}, s{t+3}
        s_and_b32 s{t+3}, s{t+1}, 1
        s_mul_i32 s{t+3}, s{t+3}, {45 * 1024}
        s_add_u32 s{t+2}, s{t+2}, s{t+3}
        s_add_u32 s{t+2}, s{t+2}, {30 * 1024}
        s_add_u32 s{t+5}, s{t+2}, 1024
        s_add_u32 s{t+3}, s{t+2}, 2048
        s_cmp_ge_u32 s{t+1}, 4
        s_cselect_b32 s{t+4}, s{t+3}, s{t+2}
        s_cselect_b32 s{t+6}, s{t+2}, s{t+3}""")
        for dx in range(3):
            for dy in range(3):
                k.e(f"buffer_store_dwordx4 {vr(B + (dy*3 + dx)*4)}, v{vL16}, {sr(rWS)}, s{t+4+dy} offen sc1")
                if dx < 2:
                    k.e(f"s_add_u32 s{t+4+dy}, s{t+4+dy}, {15 * 1024}")
        k.e(f"""s_branch L_role1_done
        L_wlocal:
        s_sub_u32 s{t+3}, s{t+1}, 8
        s_mul_i32 s{t+3}, s{t+3}, {STREAM}
        s_add_u32 s{t+2}, s{t+2}, s{t+3}
        s_add_u32 s{t+3}, s{t+2}, {120 * 1024}
        s_add_u32 s{t+4}, s{t+3}, {2 * STREAM}
        v_and_b32 v{vT}, 0x1ff, v{vL16}
        v_add_u32 v{vT+1}, {15 * 1024}, v{vT}
        v_add_u32 v{vT+2}, 512, v{vT}
        s_mov_b32 exec_lo, 0
        v_add_u32 v{vT}, {2 * STREAM}, v{vT}
        v_add_u32 v{vT+1}, 512, v{vT}
        v_add_u32 v{vT+2}, {15 * 1024}, v{vT}
        s_mov_b32 exec_lo, -1
        v_add_u32 v{vT+3}, {15 * 1024 + 512}, v{vT}""")
        for dx in range(3):
            o = f"offen offset:{dx * 1024} sc1"
            k.e(f"""buffer_store_dwordx4 {vr(B + (3 + dx)*4)}, v{vT}, {sr(rWS)}, s{t+2} {o}
            buffer_store_dwordx4 {vr(B + (6 + dx)*4)}, v{vT+2}, {sr(rWS)}, s{t+2} {o}
            buffer_store_dwordx4 {vr(B + dx*4)}, v{vT+1}, {sr(rWS)}, s{t+2} {o}
            buffer_store_dwordx4 {vr(B + (3 + dx)*4)}, v{vT+3}, {sr(rWS)}, s{t+2} {o}
            buffer_store_dwordx4 {vr(B + dx*4)}, v{vL16}, {sr(rWS)}, s{t+3} {o}
            buffer_store_dwordx4 {vr(B + (6 + dx)*4)}, v{vL16}, {sr(rWS)}, s{t+4} {o}""")

    def role_emb(self):
        k = self.k
        t = sT
        S = B
        E = B + 12
        WL = B + 24
        AC = B + 40
        k.e("s_waitcnt vmcnt(0)")
        for b in range(2):
            for d in range(3):
                k.e(f"v_lshlrev_b32 v{S + b*6 + 2*d}, 16, v{XI + 8 + b*4 + d}")
                k.e(f"v_and_b32 v{S + b*6 + 2*d + 1}, 0xffff0000, v{XI + 8 + b*4 + d}")
        for i in range(12):
            k.e(f"v_mul_f32 v{S + i}, s{sC}, v{S + i}")
        for i in range(12):
            k.e(f"v_exp_f32 v{E + i}, v{S + i}")
        for i in range(12):
            k.e(f"v_fma_f32 v{E + i}, v{E + i}, s{sC}, s{sC}")
        for i in range(12):
            k.e(f"v_rcp_f32 v{E + i}, v{E + i}")
        for i in range(12):
            k.e(f"v_mul_f32 v{S + i}, v{S + i}, v{E + i}")
        for i in range(6):
            k.e(f"v_lshlrev_b32 v{WL + 2*i}, 16, v{XI + i}")
            k.e(f"v_and_b32 v{WL + 2*i + 1}, 0xffff0000, v{XI + i}")
        for i in range(6):
            for b in range(2):
                for o in range(2):
                    opn = "v_mul_f32" if i == 0 else "v_fmac_f32"
                    k.e(f"{opn} v{AC + b*4 + o}, v{S + b*6 + i}, v{WL + 2*i + o}")
        for b in range(2):
            k.e(f"v_mov_b32 v{AC + b*4 + 2}, s{sTAG}")
            k.e(f"v_mov_b32 v{AC + b*4 + 3}, s{sTAG+1}")
        self.dpp_reduce([AC, AC + 1, AC + 4, AC + 5], True)
        k.e(f"""s_mul_i32 s{t}, s{sG}, 4608
        s_lshl_b32 s{t+1}, s{sU}, 4
        s_add_u32 s{t}, s{t}, s{t+1}
        s_add_u32 s{t}, s{t}, {WS_WFLAG + 1024 - 63 * 16}
        s_mov_b32 exec_lo, 0
        s_mov_b32 exec_hi, 0x80000000
        buffer_store_dwordx4 {vr(AC)}, v{vL16}, {sr(rWS)}, s{t} offen sc1
        buffer_store_dwordx4 {vr(AC + 4)}, v{vL16}, {sr(rWS)}, s{t} offen offset:1024 sc1
        s_mov_b64 exec, -1""")

    def poll_weights(self):
        k = self.k
        t = sT
        k.e(f"""s_mul_i32 s{t}, s{sG}, 4608
        s_add_u32 s{t}, s{t}, {WS_WFLAG}
        s_lshl_b32 s{t+1}, s{sB}, 10
        s_add_u32 s{t+1}, s{t+1}, s{t}
        s_mov_b32 s{t+2}, -1
        s_mov_b32 s{t+3}, 0xff
        s_mov_b32 exec_hi, 0x3ffff""")
        self.poll("L_pwt", [
            f"buffer_load_dwordx2 {vr(vT,2)}, v{vL8}, {sr(rWS)}, s{t} offen sc1",
            f"buffer_load_dwordx2 {vr(vT+2,2)}, v{vL8}, {sr(rWS)}, s{t} offen offset:512 sc1",
            f"buffer_load_dwordx4 {vr(vT+4)}, v{vL16}, {sr(rWS)}, s{t+1} offen offset:1024 sc1"],
            [(vT, None), (vT + 2, None), (vT + 6, sr(t + 2, 2))])
        k.e(f"""s_mov_b32 exec_hi, 0xff
        v_add_u32 v{vT}, {L_EMB}, v{vL8}""")
        k.ds(f"ds_write_b64 v{vT}, {vr(vT+4,2)}")
        k.e("s_mov_b64 exec, -1")

    def epoch_update(self):
        k = self.k
        k.e(f"""s_cmp_lg_u32 s2, 0
        s_cbranch_scc1 L_noepoch
        v_lshrrev_b32 v{vT}, 5, v{vL}
        v_mul_u32_u24 v{vT}, {4608 - 512}, v{vT}
        v_add_u32 v{vT}, v{vT}, v{vL16}
        s_mov_b32 s{sT}, {WS_STATS + 8}
        s_mov_b32 s{sT+1}, {WS_STATS + 8 + 2*4608}
        s_mov_b32 s{sT+2}, {WS_STATS + 8 + 4*4608}
        s_mov_b32 s{sT+3}, {WS_STATS + 8 + 6*4608}""")
        E = B
        self.poll("L_pepoch", [f"buffer_load_dwordx2 {vr(E + 2*i, 2)}, v{vT}, {sr(rWS)}, s{sT+i} offen sc1" for i in range(4)],
                  [(E + 2 * i, None) for i in range(4)])
        k.e(f"""s_mov_b64 exec, 1
        buffer_store_dwordx2 {vr(vGR+2,2)}, v{vL16}, {sr(rWS)}, 0 offen sc1
        s_mov_b64 exec, -1
        L_noepoch:""")

    def build(self):
        k = self.k
        t = sT
        self.tick = 0
        k.e(f"{NAME}:")
        self.stamp("entry")
        k.e(f"""s_cmp_ge_u32 s2, 256
        s_cbranch_scc1 L_done
        s_load_dwordx16 s[4:19], s[0:1], 0
        s_load_dwordx8 s[20:27], s[0:1], 64
        v_lshrrev_b32 v{vT}, 6, v0
        v_and_b32 v{vL}, 63, v0
        v_readfirstlane_b32 s{sW}, v{vT}
        s_and_b32 s{t}, s2, 7
        s_lshr_b32 s{t+1}, s2, 3
        s_lshr_b32 s{sB}, s{t}, 2
        s_and_b32 s{t}, s{t}, 3
        s_lshl_b32 s{t}, s{t}, 3
        s_lshr_b32 s{t+2}, s{t+1}, 2
        s_add_u32 s{sRP}, s{t}, s{t+2}
        s_and_b32 s{sG}, s{t+1}, 3
        s_lshl_b32 s{sU}, s{sB}, 5
        s_add_u32 s{sU}, s{sU}, s{sRP}
        s_lshl_b32 s{t}, s{sB}, 2
        s_add_u32 s{t}, s{t}, s{sG}
        s_mul_i32 s{sSB}, s{t}, 4608
        s_add_u32 s{sSB}, s{sSB}, {WS_STATS}
        s_mul_i32 s{sXO}, s{t}, {80 * 8192}
        s_lshl_b32 s{t+1}, s{sRP}, 2
        s_add_u32 s{t+1}, s{t+1}, s{sW}
        s_lshl_b32 s{t+2}, s{t+1}, 10
        s_add_u32 s{sAS}, s{sXO}, s{t+2}
        s_add_u32 s{sAS}, s{sAS}, {WS_ACT}
        s_lshl_b32 s{t+2}, s{t+1}, 6
        s_add_u32 s{sXO}, s{sXO}, s{t+2}
        v_and_b32 v{vT}, 15, v{vL}
        v_bfe_u32 v{vT+1}, v{vL}, 4, 1
        v_lshrrev_b32 v{vT+2}, 5, v{vL}
        v_lshlrev_b32 v{vT+3}, 5, v{vT+1}
        v_lshl_add_u32 v{vT+3}, v{vT+2}, 4, v{vT+3}
        v_lshl_add_u32 v{vXo}, v{vT}, 13, v{vT+3}
        v_lshlrev_b32 v{vL16}, 4, v{vL}
        v_lshlrev_b32 v{vL8}, 3, v{vL}
        s_mov_b32 s{rX+2}, {2 * 320 * 8192}
        s_mov_b32 s{rX+3}, 0x20000
        s_mov_b32 s{t}, s{sXO}
        s_waitcnt lgkmcnt(0)
        s_mov_b32 s{rX}, s{sPX}
        s_mov_b32 s{rX+1}, s{sPX+1}
        s_load_dwordx2 {sr(sTAG,2)}, {sr(sPWS,2)}, 0""")
        for m in range(5):
            k.vmem(f"buffer_load_dwordx4 {vr(X + 4*m)}, v{vXo}, {sr(rX)}, s{t} offen", "X")
            if m < 4:
                k.e(f"s_add_u32 s{t}, s{t}, 131072")
        k.c("wave w fetches parameter array w (g1, be1, g2, be2) of this group")
        k.e(f"""s_cmp_lt_u32 s{sW}, 2
        s_cselect_b64 {sr(t,2)}, {sr(sPG1,2)}, {sr(sPG2,2)}
        s_cselect_b64 {sr(t+2,2)}, {sr(sPB1,2)}, {sr(sPB2,2)}
        s_bitcmp0_b32 s{sW}, 0
        s_cselect_b64 {sr(t,2)}, {sr(t,2)}, {sr(t+2,2)}
        s_mul_i32 s{t+2}, s{sG}, 160
        v_min_u32 v{vT+4}, 39, v{vL}
        v_lshlrev_b32 v{vT+4}, 2, v{vT+4}
        v_add_u32 v{vT+5}, s{t+2}, v{vT+4}""")
        k.vmem(f"global_load_dword v{vRS}, v{vT+5}, {sr(t,2)}", "PAR")
        k.e(f"""s_mul_i32 s{t}, s{sW}, 160
        s_add_u32 s{t}, s{t}, {L_PAR}
        v_add_u32 v{vKK}, s{t}, v{vT+4}""")
        self.role_loads()
        k.c("descriptors and per-lane addresses")
        k.e(f"""s_mov_b32 s{rO}, s{sPO}
        s_mov_b32 s{rO+1}, s{sPO+1}
        s_mov_b32 s{rO+2}, {2 * 320 * 8192}
        s_mov_b32 s{rO+3}, 0x20000
        s_mov_b32 s{rWS}, s{sPWS}
        s_mov_b32 s{rWS+1}, s{sPWS+1}
        s_mov_b32 s{rWS+2}, {WS_SIZE}
        s_mov_b32 s{rWS+3}, 0x20000
        s_mov_b32 s{rA0}, s{sPWS}
        s_mov_b32 s{rA0+1}, s{sPWS+1}
        s_mov_b32 s{rA0+3}, 0x20000
        s_mov_b32 s{rA3}, s{sPWS}
        s_mov_b32 s{rA3+1}, s{sPWS+1}
        s_mov_b32 s{rA3+3}, 0x20000
        s_cmp_eq_u32 s{sRP}, 0
        s_cselect_b32 s{t}, 0, {WS_SIZE}
        s_cselect_b32 s{sMASK}, 0xfcfcfcfc, -1
        s_cmp_eq_u32 s{sRP}, 31
        s_cselect_b32 s{t+1}, 0, {WS_SIZE}
        s_cselect_b32 s{sMASK}, 0x3f3f3f3f, s{sMASK}
        s_cmp_lt_u32 s{sW}, 2
        s_cselect_b32 s{rA0+2}, s{t}, s{t+1}
        s_cselect_b32 s{rA3+2}, s{t+1}, s{t}
        s_mov_b32 s{t}, 0xfffff800
        s_cselect_b32 s{sRS}, 2048, s{t}
        s_cselect_b32 s{t}, s{t}, 4096
        s_lshl_b32 s{t+1}, s{sRP}, 12
        s_add_u32 s{t}, s{t}, s{t+1}
        s_mul_i32 s{t+1}, s{sB}, {20 * 131072}
        s_add_u32 s{t}, s{t}, s{t+1}
        s_add_u32 s{t}, s{t}, {WS_ACT}
        s_mov_b32 s{sC}, {f32(-LOG2E)}
        s_mul_i32 s{sLB}, s{sW}, {WSZ}""")
        for i in range(4):
            k.e(f"""s_lshl_b32 s{t+1}, s{sW}, 1
            s_add_u32 s{t+1}, s{t+1}, {(i >> 1) * 8 + (i & 1)}""")
            self.plane_of(sPL + i, t + 1, t + 2, t + 3)
            k.e(f"""s_lshl_b32 s{sPL+i}, s{sPL+i}, 17
            s_add_u32 s{sPL+i}, s{sPL+i}, s{t}""")
        k.e(f"""s_mul_i32 s{t+1}, s{sG}, 5
        s_and_b32 s{t+2}, s{sW}, 1
        s_add_u32 s{t+1}, s{t+1}, s{t+2}
        s_lshl_b32 s{t+1}, s{t+1}, 17
        s_add_u32 s{sPH}, s{t+1}, s{t}
        s_lshl_b32 s{t}, s{sG}, 2
        s_add_u32 s{t}, s{t}, s{sW}
        s_mul_i32 s{sA}, s{t}, {STREAM}
        s_add_u32 s{sA}, s{sA}, {WS_WT}
        s_mul_i32 s{t}, s{sB}, 34
        s_add_u32 s{t}, s{t}, s{sRP}
        s_lshl_b32 s{t}, s{t}, 10
        s_add_u32 s{t}, s{t}, {WS_AFLAG}
        s_lshl_b32 s{t+1}, s{sG}, 8
        s_add_u32 s{sFM}, s{t}, s{t+1}
        s_add_u32 s{sFM}, s{sFM}, 1024
        s_lshl_b32 s{t+1}, s{sG}, 6
        s_add_u32 s{sFP}, s{t}, s{t+1}
        s_lshl_b32 s{t+1}, s{sW}, 3
        s_add_u32 s{sFP}, s{sFP}, s{t+1}
        s_cmp_lt_u32 s{sW}, 2
        s_cselect_b32 s{t}, 48, {2048 - 16}
        v_and_b32 v{vFP}, 3, v{vL}
        v_lshlrev_b32 v{vFP}, 8, v{vFP}
        v_add_u32 v{vT+4}, s{t}, v{vFP}
        v_add_u32 v{vFP}, {1024 + 16}, v{vFP}
        s_mov_b64 exec, 0xf0
        v_mov_b32 v{vFP}, v{vT+4}
        s_mov_b64 exec, -1
        v_and_b32 v{vT}, 15, v{vL}
        v_bfe_u32 v{vT+1}, v{vL}, 4, 1
        v_lshrrev_b32 v{vT+2}, 5, v{vL}
        v_lshlrev_b32 v{vT+3}, 5, v{vT}
        v_lshl_add_u32 v{vAo}, v{vT+1}, 9, v{vT+3}
        v_lshl_add_u32 v{vAo}, v{vT+2}, 4, v{vAo}
        v_lshl_add_u32 v{vT+3}, v{vT+1}, 4, v{vT+3}
        s_and_b32 s{t}, s{sW}, 1
        s_lshl_b32 s{t}, s{t}, 10
        s_xor_b32 s{t+1}, s{t}, 1024
        s_add_u32 s{t+2}, s{t}, s{sLB}
        s_add_u32 s{t+3}, s{t+1}, s{sLB}
        v_mul_u32_u24 v{vT+4}, {4 * ROW}, v{vT+2}
        v_add3_u32 v{vBS}, v{vT+3}, v{vT+4}, s{t+2}
        v_add3_u32 v{vBS+1}, v{vT+3}, v{vT+4}, s{t+3}
        v_mul_u32_u24 v{vT+4}, {ROW}, v{vT+2}
        v_add_u32 v{vT+4}, {16 * ROW}, v{vT+4}
        v_add3_u32 v{vBL}, v{vT+3}, v{vT+4}, s{t+2}
        v_add3_u32 v{vBL+1}, v{vT+3}, v{vT+4}, s{t+3}
        v_add3_u32 v{vOB}, v{vL16}, 32, s{sLB}""")
        for u in range(1, 4):
            k.e(f"""s_xor_b32 s{t+2}, s{sW}, {u}
            s_mul_i32 s{t+2}, s{t+2}, {WSZ}
            v_add3_u32 v{vIB+u-1}, v{vL16}, 32, s{t+2}""")
        k.e(f"""s_lshr_b32 s{t+1}, s{sW}, 1
        s_mul_i32 s{t+1}, s{t+1}, {ROW}
        s_add_u32 s{t+2}, s{t}, {16 * ROW + 32}
        s_add_u32 s{t+3}, s{t+2}, s{t+1}
        v_add_u32 v{vLW}, s{t+3}, v{vAo}
        s_add_u32 s{t+2}, s{t+2}, {2 * WSZ + ROW}
        s_sub_u32 s{t+3}, s{t+2}, s{t+1}
        v_add_u32 v{vLW+1}, s{t+3}, v{vAo}
        v_lshrrev_b32 v{vPR}, 4, v{vL}
        v_lshlrev_b32 v{vPR}, 3, v{vPR}
        v_add_u32 v{vPR}, {L_PAR}, v{vPR}""")
        k.c("zero the 32-byte pads between LDS rows")
        k.e(f"""v_lshrrev_b32 v{vT}, 1, v{vL}
        v_min_u32 v{vT}, 18, v{vT}
        v_mul_u32_u24 v{vT}, {ROW}, v{vT}
        v_and_b32 v{vT+1}, 1, v{vL}
        v_lshlrev_b32 v{vT+1}, 4, v{vT+1}
        v_add3_u32 v{vT}, v{vT}, v{vT+1}, s{sLB}
        v_mov_b32 v{vT+4}, 0
        v_mov_b32 v{vT+5}, 0
        v_mov_b32 v{vT+6}, 0
        v_mov_b32 v{vT+7}, 0
        ds_write_b128 v{vT}, {vr(vT+4)}
        v_mov_b32 v{vGR}, 0
        v_mov_b32 v{vGR+1}, 0
        v_mov_b32 v{vT+1}, 0x3f803f80
        s_waitcnt lgkmcnt(0)
        s_add_u32 s{sTAG}, s{sTAG}, 1
        s_addc_u32 s{sTAG+1}, s{sTAG+1}, 0
        v_mov_b32 v{vGR+2}, s{sTAG}
        v_mov_b32 v{vGR+3}, s{sTAG+1}
        s_cmp_eq_u32 s{sROLE}, 0
        s_cbranch_scc1 L_wait0
        s_waitcnt vmcnt(8)
        s_branch L_wait0_done
        L_wait0:
        s_waitcnt vmcnt(0)
        L_wait0_done:""")
        k.vm = []
        self.stamp("xload")
        for i in range(20):
            k.e(f"v_dot2c_f32_bf16 v{vGR}, v{X + i}, v{vT+1}")
            k.e(f"v_dot2c_f32_bf16 v{vGR+1}, v{X + i}, v{X + i}")
        k.ds(f"ds_write_b32 v{vKK}, v{vRS}")
        k.e("s_nop 0")
        self.wave_partial_to_lds()
        k.wait_all(l=True)
        k.e("s_barrier")
        k.e(f"""s_cmp_eq_u32 s{sROLE}, 1
        s_cbranch_scc1 L_role1_w
        s_cmp_eq_u32 s{sROLE}, 2
        s_cbranch_scc1 L_role1_e
        s_cmp_lg_u32 s{sW}, 0
        s_cbranch_scc1 L_role1_done""")
        self.publish_stats(0)
        k.e("s_branch L_role1_done\nL_role1_e:")
        self.role_emb()
        k.e("s_branch L_role1_done\nL_role1_w:")
        self.role_weights()
        k.e("L_role1_done:")
        k.c("transpose x through LDS into the accumulator layout")
        k.e(f"""v_and_b32 v{vT}, 15, v{vL}
        v_lshlrev_b32 v{vT}, 6, v{vT}
        v_and_b32 v{vT+1}, 0x3f, v{vXo}
        v_add3_u32 v{vT}, v{vT}, v{vT+1}, s{sLB}
        v_lshrrev_b32 v{vT+1}, 2, v{vL}
        v_lshlrev_b32 v{vT+1}, 6, v{vT+1}
        v_and_b32 v{vT+2}, 3, v{vL}
        v_lshlrev_b32 v{vT+2}, 3, v{vT+2}
        v_add3_u32 v{vT+1}, v{vT+1}, v{vT+2}, s{sLB}""")
        for m in range(5):
            k.ds(f"ds_write_b128 v{vT}, {vr(X + 4*m)} offset:{32 + (m >> 1) * ROW + (m & 1) * 1024}")
        k.wait_all(l=True)
        PX = B + 40
        for jj in range(2):
            for m in range(5):
                k.ds(f"ds_read_b64_tr_b16 {vr(PX + (jj*5 + m)*2, 2)}, v{vT+1} offset:{32 + (m >> 1) * ROW + (m & 1) * 1024 + jj * 32}")
        k.wait_all(l=True)
        for i in range(20):
            k.e(f"v_lshlrev_b32 v{H + 2*i}, 16, v{PX + i}")
            k.e(f"v_and_b32 v{H + 2*i + 1}, 0xffff0000, v{PX + i}")
        self.load_params(0)
        k.e(f"""s_cmp_eq_u32 s{sROLE}, 1
        s_cbranch_scc1 L_role2_w
        s_cmp_lg_u32 s{sW}, 0
        s_cbranch_scc1 L_role2_done""")
        self.poll_stats(0)
        k.e(f"""s_branch L_role2_done
        L_role2_w:
        s_mul_i32 s{t}, s{sG}, 4608
        s_lshl_b32 s{t+1}, s{sU}, 3
        s_add_u32 s{t}, s{t}, s{t+1}
        s_lshl_b32 s{t+1}, s{sW}, 9
        s_add_u32 s{t}, s{t}, s{t+1}
        s_add_u32 s{t}, s{t}, {WS_WFLAG - 512}
        s_waitcnt vmcnt(0)
        s_mov_b64 exec, 1
        buffer_store_dwordx2 {vr(vGR+2,2)}, v{vL16}, {sr(rWS)}, s{t} offen sc1
        s_mov_b64 exec, -1
        L_role2_done:""")
        k.wait_all(l=True)
        k.e("s_barrier")
        self.stamp("stats1")
        self.activation(0)
        self.push_flags(0)
        k.e(f"""s_cmp_lg_u32 s{sW}, 1
        s_cbranch_scc1 L_nopw""")
        self.poll_weights()
        k.e("L_nopw:")
        k.wait_all(l=True)
        k.e("s_barrier")
        self.stamp("wflags")
        self.emit_ops(self.a_load_ops(30))
        k.e(f"v_lshl_add_u32 v{vT}, v{vPR}, 1, 0")
        k.e(f"v_add_u32 v{vT}, {(L_EMB - 2 * L_PAR) & 0xffffffff}, v{vT}")
        for m in range(5):
            k.ds(f"ds_read_b128 {vr(XI + 4*m)}, v{vT} offset:{m * 64}", "EM0")
        self.conv(0)
        self.stamp("red1")
        k.c("second group norm statistics")
        k.e(f"v_pk_mul_f32 {vr(vT,2)}, {vr(H,2)}, {vr(H,2)}")
        k.e(f"v_pk_add_f32 {vr(vT+2,2)}, {vr(H,2)}, {vr(H+2,2)}")
        for i in range(2, 40, 2):
            k.e(f"v_pk_fma_f32 {vr(vT,2)}, {vr(H+i,2)}, {vr(H+i,2)}, {vr(vT,2)}")
            if i > 2:
                k.e(f"v_pk_add_f32 {vr(vT+2,2)}, {vr(vT+2,2)}, {vr(H+i,2)}")
        k.e(f"""v_add_f32 v{vGR+1}, v{vT}, v{vT+1}
        v_add_f32 v{vGR}, v{vT+2}, v{vT+3}
        s_nop 0""")
        self.wave_partial_to_lds()
        k.wait_all(l=True)
        k.e("s_barrier")
        k.e(f"""s_cmp_lg_u32 s{sW}, 0
        s_cbranch_scc1 L_nopub2""")
        self.publish_stats(1)
        k.e("L_nopub2:")
        self.load_params(1)
        k.c("residual x unpacked as the initial accumulator of the second convolution")
        for m in range(5):
            k.e(f"v_permlane16_swap_b32 v{X + 4*m}, v{X + 4*m + 2}")
            k.e(f"v_permlane16_swap_b32 v{X + 4*m + 1}, v{X + 4*m + 3}")
        for m in range(5):
            for jj in range(2):
                for d in range(2):
                    src = X + 4 * m + jj * 2 + d
                    dst = XI + (jj * 5 + m) * 4 + d * 2
                    k.e(f"v_lshlrev_b32 v{dst}, 16, v{src}")
                    k.e(f"v_and_b32 v{dst + 1}, 0xffff0000, v{src}")
        vm_saved = list(k.vm)
        k.e(f"""s_cmp_eq_u32 s{sW}, 3
        s_cbranch_scc1 L_mid_w3
        s_cmp_lg_u32 s{sW}, 0
        s_cbranch_scc1 L_mid_done""")
        self.poll_stats(1)
        k.e("s_branch L_mid_done\nL_mid_w3:")
        self.epoch_update()
        k.e("L_mid_done:")
        k.vm = vm_saved
        k.wait_all(l=True)
        k.e("s_barrier")
        self.stamp("stats2")
        self.activation(1)
        k.wait_all(l=True)
        k.e("s_barrier")
        self.conv(1)
        self.stamp("red2")
        k.e(f"s_mov_b32 s{t}, s{sXO}")
        for m in range(5):
            PK = B + m * 4
            for jj in range(2):
                for d in range(2):
                    h = H + (jj * 5 + m) * 4 + d * 2
                    k.e(f"v_cvt_pk_bf16_f32 v{PK + jj*2 + d}, v{h}, v{h + 1}")
            k.e("s_nop 0")
            k.e(f"v_permlane16_swap_b32 v{PK}, v{PK + 2}")
            k.e(f"v_permlane16_swap_b32 v{PK + 1}, v{PK + 3}")
            k.vmem(f"buffer_store_dwordx4 {vr(PK)}, v{vXo}, {sr(rO)}, s{t} offen")
            if m < 4:
                k.e(f"s_add_u32 s{t}, s{t}, 131072")
        if self.stamps:
            k.wait_all(v=True)
            self.stamp("end")
            k.wait_all(l=True)
            k.e(f"v_mov_b32 v{vT}, 0")
            for i in range(self.nstamp):
                k.e(f"v_writelane_b32 v{vT}, s{sSTAMP + 2*i}, {i}")
            k.e(f"""s_lshl_b32 s{t}, s2, 2
            s_add_u32 s{t}, s{t}, s{sW}
            s_lshl_b32 s{t}, s{t}, 8
            s_add_u32 s{t}, s{t}, {WS_DBG}
            v_lshlrev_b32 v{vT+1}, 2, v{vL}
            buffer_store_dword v{vT}, v{vT+1}, {sr(rWS)}, s{t} offen""")
        k.e("L_done:\ns_endpgm")

    def conv(self, conv):
        k = self.k
        k.c(f"convolution {conv + 1}")
        for j in range(4):
            for dx in range(3):
                self.emit_op(self.bl_read(dx, j, f"BL{conv}"))
        self.run(self.phase_local(conv, 0))
        self.flush_side()
        if conv == 1:
            self.push_flags(1)
        self.poll_flags(conv)
        self.stamp(f"aflags{conv+1}")
        self.emit_ops(self.dma_pair_ops(0, conv))
        mf = self.phase_local(conv, 1)
        for step in range(6):
            mf += self.phase_step(conv, step)
        mf += self.phase_tail(conv)
        self.run(mf)
        self.stamp(f"mfma{conv+1}")
        self.reduce()

    def text(self):
        hdr = open("standalone__adm_resblock__diffusion.s.ref").read().split("; Override launch")[0]
        out = hdr
        out += f"; @launch grid=(256,1,1) block=(256,1,1) lds={LDS_BYTES}\n"
        out += '.amdgcn_target "amdgcn-amd-amdhsa--gfx950"\n.text\n'
        out += f".globl {NAME}\n.p2align 8\n.type {NAME},@function\n"
        out += self.k.text()
        out += f""".section .rodata,"a"
.p2align 6
.amdhsa_kernel {NAME}
  .amdhsa_next_free_vgpr 496
  .amdhsa_next_free_sgpr 102
  .amdhsa_accum_offset 256
  .amdhsa_group_segment_fixed_size 0
  .amdhsa_kernarg_size 96
  .amdhsa_user_sgpr_count 2
  .amdhsa_user_sgpr_kernarg_segment_ptr 1
  .amdhsa_system_sgpr_workgroup_id_x 1
  .amdhsa_float_denorm_mode_32 3
.end_amdhsa_kernel
"""
        return out


def make(path, stamps=False, opts=None):
    g = Gen(stamps, opts)
    g.build()
    errs = check_hazards(g.k.lines)
    for e in errs:
        print("HAZARD", e)
    open(path, "w").write(g.text())
    if stamps:
        open(path + ".stamps", "w").write(" ".join(g.stamp_names))
    return len(errs)


if __name__ == "__main__":
    n = make("standalone__adm_resblock__diffusion.s")
    n += make("diag.s", stamps=True)
    sys.exit(1 if n else 0)
```
